```python
import torch

def _softmax(x, axis=-1):
    return torch.softmax(x, dim=axis)
def _gelu(x):
    return torch.nn.functional.gelu(x, approximate="tanh")
def _silu(x):
    return torch.nn.functional.silu(x)
def _sigmoid(x):
    return torch.sigmoid(x)
def _layernorm(x, axis=-1, eps=1e-5):
    m = x.mean(dim=axis, keepdim=True)
    v = x.var(dim=axis, keepdim=True, unbiased=False)
    return (x - m) / torch.sqrt(v + eps)
def _scatter_add(tgt, idx, src, axis=0):
    return tgt.clone().index_add_(axis, idx, src)
def _segment_sum(src, seg, n):
    out = torch.zeros((n,) + src.shape[1:], dtype=src.dtype)
    return out.index_add_(0, seg, src)
def _pad(x, pw):
    flat = tuple(v for pair in reversed(pw) for v in pair)
    return torch.nn.functional.pad(x, flat)

kernel_name = 'standalone__ragged_sequences_packed_sequences__ragged'

def setup_inputs():

    _w = (lambda a: (lambda t: t.to(torch.bfloat16) if t.is_floating_point() else t)(torch.as_tensor(a)))
    cu = torch.tensor([0, 370, 478, 621, 984, 1149, 1581, 1681, 2146], dtype=torch.int64)
    T = int(cu[-1])
    H, D = 16, 128
    lens = torch.diff(cu)
    seg_ids = torch.repeat_interleave(torch.arange(len(lens), dtype=torch.int64), lens)
    return {
        "q": _w((lambda *s: torch.randn(*s, dtype=torch.bfloat16) * 0.8)(T, H, D)),
        "k": _w((lambda *s: torch.randn(*s, dtype=torch.bfloat16) * 0.8)(T, H, D)),
        "v": _w((lambda *s: torch.randn(*s, dtype=torch.bfloat16) * 0.05)(T, H, D)),
        "seg_ids": _w(seg_ids),
    }

def reference(q, k, v, seg_ids):
    T, H, D = q.shape
    scale = D ** -0.5
    same_seq = seg_ids[:, None] == seg_ids[None, :]
    logits = torch.einsum("qhd,khd->hqk", q, k) * scale
    bias = (1.0 - (lambda x, dt: x.to(dt))(same_seq, q.dtype)) * (-1e9)
    p = _softmax(logits + bias[None, :, :], axis=-1)
    return torch.einsum("hqk,khd->qhd", p, v)
```

```python
NAME = "standalone__ragged_sequences_packed_sequences__ragged"
HEADER = """; Kernarg layout for this problem (56 bytes, ptrs only, base s[0:1]):
"""

class Asm:
    def __init__(self):
        self.lines = []
        self.maxv = 0
    def __call__(self, s, *args):
        for l in s.split("\n"):
            self.lines.append("    " + l.strip() if not l.strip().endswith(":") else l.strip())
    def label(self, n):
        self.lines.append(n + ":")
    def c(self, s):
        self.lines.append("    ; " + s)
    def text(self):
        return "\n".join(self.lines) + "\n"

def v(i, n=1):
    return "v%d" % i if n == 1 else "v[%d:%d]" % (i, i + n - 1)
def s(i, n=1):
    return "s%d" % i if n == 1 else "s[%d:%d]" % (i, i + n - 1)

def wrap(body, grid, block, lds, nvgpr, nsgpr=102, extra_text="", comments=""):
    acc = (nvgpr + 3) // 4 * 4
    return (HEADER + comments +
        "; @launch grid=(%d,1,1) block=(%d,1,1) lds=%d\n" % (grid, block, lds) +
        '.amdgcn_target "amdgcn-amd-amdhsa--gfx950"\n.text\n.globl %s_kernel\n.p2align 8\n.type %s_kernel,@function\n%s_kernel:\n' % (NAME, NAME, NAME) +
        body + extra_text +
        '.section .rodata,"a"\n.p2align 6\n.amdhsa_kernel %s_kernel\n' % NAME +
        "  .amdhsa_next_free_vgpr %d\n  .amdhsa_next_free_sgpr %d\n  .amdhsa_accum_offset %d\n" % (nvgpr, nsgpr, acc) +
        "  .amdhsa_group_segment_fixed_size 0\n  .amdhsa_kernarg_size 56\n  .amdhsa_user_sgpr_count 2\n" +
        "  .amdhsa_user_sgpr_kernarg_segment_ptr 1\n  .amdhsa_system_sgpr_workgroup_id_x 1\n.end_amdhsa_kernel\n")
```

```python
import sys, math, struct
from asmlib import *

CU = [0, 370, 478, 621, 984, 1149, 1581, 1681, 2146]
NB = 2146 * 4096
items = []
for si in range(8):
    a, b = CU[si], CU[si + 1]
    n = b - a
    for q0 in range(a, b, 128):
        items.append((a, b, q0, (n + 31) // 32))
items.sort(key=lambda x: -x[3])
NI = len(items)
KSLOT = 8448
SLOT = 2 * KSLOT
NS = 3
QBASE = NS * SLOT
LDS = QBASE + 4 * KSLOT
C = (128 ** -0.5) * math.log2(math.e)
def f2u(x): return struct.unpack("<I", struct.pack("<f", x))[0]

A = Asm()
sQ, sK, sV, sO = 8, 12, 16, 20
sA, sB, sQ0, sNT = 24, 25, 26, 27
sHead, sW, sJ, sT0, sT1, sC = 28, 29, 30, 31, 32, 33
sKoff, sSlotW, sSlotR, sM0, sRem = 34, 35, 36, 37, 38
sExec = 40
vO = 0 + 16
vQ = 80
vS = 112
vCb = 128
vP = 144
vK = 152
vV = 184
vKa, vVa, vKd0, vKd1, vVd0, vVd1 = 1, 2, 3, 4, 5, 6
vM, vL, vT0, vT1, vT2, vNM, vKr, vVr, vLane = 7, 8, 9, 10, 11, 12, 13, 14, 15
NV = 216

A("""s_load_dwordx4 s[4:7], s[0:1], 0
s_load_dwordx2 s[44:45], s[0:1], 16
s_load_dwordx2 s[46:47], s[0:1], 32""")
A("s_cmp_ge_u32 s2, %d" % (NI * 16))
A("s_cbranch_scc1 L_end")
A("s_and_b32 %s, s2, 7" % s(sT0))
A("s_lshr_b32 %s, s2, 3" % s(sT1))
A("s_lshl_b32 %s, %s, 1" % (s(sHead), s(sT0)))
A("s_and_b32 %s, %s, 1" % (s(sT0), s(sT1)))
A("s_add_u32 %s, %s, %s" % (s(sHead), s(sHead), s(sT0)))
A("s_lshr_b32 %s, %s, 1" % (s(sT1), s(sT1)))
A("s_lshl_b32 %s, %s, 4" % (s(sT1), s(sT1)))
A("s_getpc_b64 s[42:43]")
A.label("L_pc")
A("s_add_u32 s42, s42, L_table-L_pc")
A("s_addc_u32 s43, s43, 0")
A("s_load_dwordx4 %s, s[42:43], %s" % (s(sA, 4), s(sT1)))
A("v_lshrrev_b32 v1, 6, v0")
A("v_and_b32 %s, 63, v0" % v(vLane))
A("v_readfirstlane_b32 %s, v1" % s(sW))
A("s_waitcnt lgkmcnt(0)")
for srd, p in ((sQ, 4), (sK, 6), (sV, 44), (sO, 46)):
    A("s_mov_b32 %s, s%d" % (s(srd), p))
    A("s_mov_b32 %s, s%d" % (s(srd + 1), p + 1))
    A("s_mov_b32 %s, %d" % (s(srd + 2), NB))
    A("s_mov_b32 %s, 0x20000" % s(srd + 3))
A("s_mov_b32 %s, 0x%x" % (s(sC), f2u(C)))
A("s_lshl_b32 %s, %s, 8" % (s(sHead), s(sHead)))
A.c("K-type piece voffset: ((sig&1)+16*(sig>>1))*4096 + ((c16 ^ (sig&1))*16)")
A("v_lshrrev_b32 %s, 4, %s" % (v(vT0), v(vLane)))
A("v_and_b32 %s, 1, %s" % (v(vT1), v(vT0)))
A("v_lshrrev_b32 %s, 1, %s" % (v(vT2), v(vT0)))
A("v_lshlrev_b32 %s, 16, %s" % (v(vT2), v(vT2)))
A("v_lshl_add_u32 %s, %s, 12, %s" % (v(vT2), v(vT1), v(vT2)))
A("v_and_b32 %s, 15, %s" % (v(vKd0), v(vLane)))
A("v_xor_b32 %s, %s, %s" % (v(vKd0), v(vKd0), v(vT1)))
A("v_lshl_add_u32 %s, %s, 4, %s" % (v(vKd0), v(vKd0), v(vT2)))
A("v_add_u32 %s, %d, %s" % (v(vKd1), 8192 - 1056, v(vKd0)))
A.c("V-type: (16e + 4 sig + r)*4096 + c16*16 ; r = wave")
A("v_lshlrev_b32 %s, 14, %s" % (v(vT2), v(vT0)))
A("v_and_b32 %s, 15, %s" % (v(vVd0), v(vLane)))
A("v_lshl_add_u32 %s, %s, 4, %s" % (v(vVd0), v(vVd0), v(vT2)))
A("s_lshl_b32 %s, %s, 12" % (s(sT0), s(sW)))
A("v_add_u32 %s, %s, %s" % (v(vVd0), s(sT0), v(vVd0)))
A("v_add_u32 %s, %d, %s" % (v(vVd1), 65536 - 1024, v(vVd0)))
A("s_lshl_b32 %s, %s, 5" % (s(sT0), s(sW)))
A("s_add_u32 %s, %s, %s" % (s(sQ0), s(sQ0), s(sT0)))
A("s_lshl_b32 %s, %s, 12" % (s(sT0), s(sQ0)))
A("s_add_u32 %s, %s, %s" % (s(sT0), s(sT0), s(sHead)))
A("s_mul_i32 %s, %s, %d" % (s(sT1), s(sW), KSLOT))
A("s_add_u32 %s, %s, %d" % (s(sT1), s(sT1), QBASE))
for p in range(0, 8, 2):
    A("s_add_u32 m0, %s, %d" % (s(sT1), p * 1056))
    A("s_nop 0")
    A("buffer_load_dwordx4 %s, %s, %s offen lds" % (v(vKd0), s(sQ, 4), s(sT0)))
    A("buffer_load_dwordx4 %s, %s, %s offen offset:1056 lds" % (v(vKd1), s(sQ, 4), s(sT0)))
    A("s_add_u32 %s, %s, 16384" % (s(sT0), s(sT0)))
A("s_lshl_b32 %s, %s, 14" % (s(sT0), s(sW)))
A("v_add_u32 %s, %s, %s" % (v(vKd0), s(sT0), v(vKd0)))
A("v_add_u32 %s, %s, %s" % (v(vKd1), s(sT0), v(vKd1)))
A("s_lshl_b32 %s, %s, 12" % (s(sKoff), s(sA)))
A("s_add_u32 %s, %s, %s" % (s(sKoff), s(sKoff), s(sHead)))
A("s_mul_i32 %s, %s, 2112" % (s(sM0), s(sW)))
A("s_mov_b32 %s, 0" % s(sSlotW))
def dma_tile():
    A("s_add_u32 m0, %s, %s" % (s(sSlotW), s(sM0)))
    A("s_nop 0")
    A("buffer_load_dwordx4 %s, %s, %s offen lds" % (v(vKd0), s(sK, 4), s(sKoff)))
    A("buffer_load_dwordx4 %s, %s, %s offen offset:1056 lds" % (v(vKd1), s(sK, 4), s(sKoff)))
    A("s_add_u32 m0, m0, %d" % KSLOT)
    A("s_nop 0")
    A("buffer_load_dwordx4 %s, %s, %s offen lds" % (v(vVd0), s(sV, 4), s(sKoff)))
    A("buffer_load_dwordx4 %s, %s, %s offen offset:1024 lds" % (v(vVd1), s(sV, 4), s(sKoff)))
    A("s_add_u32 %s, %s, %d" % (s(sKoff), s(sKoff), 32 * 4096))
    A("s_add_u32 %s, %s, %d" % (s(sSlotW), s(sSlotW), SLOT))
    A("s_cmp_ge_u32 %s, %d" % (s(sSlotW), NS * SLOT))
    A("s_cselect_b32 %s, 0, %s" % (s(sSlotW), s(sSlotW)))
dma_tile()
dma_tile()
A.c("K frag addr: ((row>>1)&7)*1056 + ((row&1)+2*(row>>4))*256 + ((h^(row&1))<<4)")
A("v_and_b32 %s, 31, %s" % (v(vT0), v(vLane)))
A("v_bfe_u32 %s, %s, 1, 3" % (v(vT1), v(vT0)))
A("v_mul_u32_u24 %s, 1056, %s" % (v(vKa), v(vT1)))
A("v_and_b32 %s, 1, %s" % (v(vT1), v(vT0)))
A("v_lshrrev_b32 %s, 4, %s" % (v(vT2), v(vT0)))
A("v_lshl_add_u32 %s, %s, 1, %s" % (v(vT2), v(vT2), v(vT1)))
A("v_lshl_add_u32 %s, %s, 8, %s" % (v(vKa), v(vT2), v(vKa)))
A("v_lshrrev_b32 %s, 5, %s" % (v(vT2), v(vLane)))
A("v_xor_b32 %s, %s, %s" % (v(vT1), v(vT1), v(vT2)))
A("v_lshl_add_u32 %s, %s, 4, %s" % (v(vKa), v(vT1), v(vKa)))
A.c("V frag addr: KSLOT + r*2112 + h*256 + 32*g16 + 16*(c&1) + 8*(c>>1)")
A("v_bfe_u32 %s, %s, 2, 2" % (v(vT0), v(vLane)))
A("v_mul_u32_u24 %s, 2112, %s" % (v(vVa), v(vT0)))
A("v_lshl_add_u32 %s, %s, 8, %s" % (v(vVa), v(vT2), v(vVa)))
A("v_bfe_u32 %s, %s, 4, 1" % (v(vT0), v(vLane)))
A("v_lshl_add_u32 %s, %s, 5, %s" % (v(vVa), v(vT0), v(vVa)))
A("v_and_b32 %s, 1, %s" % (v(vT0), v(vLane)))
A("v_lshl_add_u32 %s, %s, 4, %s" % (v(vVa), v(vT0), v(vVa)))
A("v_bfe_u32 %s, %s, 1, 1" % (v(vT0), v(vLane)))
A("v_lshl_add_u32 %s, %s, 3, %s" % (v(vVa), v(vT0), v(vVa)))
A("v_add_u32 %s, %d, %s" % (v(vVa), KSLOT, v(vVa)))
for i in range(64):
    A("v_mov_b32 %s, 0" % v(vO + i))
for i in range(16):
    A("v_mov_b32 %s, 0" % v(vCb + i))
A("v_mov_b32 %s, 0xff800000" % v(vM))
A("v_mov_b32 %s, 0" % v(vL))
A("s_waitcnt vmcnt(8)")
A("v_add_u32 %s, %s, %s" % (v(vT0), s(sT1), v(vKa)))
for ss in range(8):
    A("ds_read_b128 %s, %s offset:%d" % (v(vQ + 4 * ss, 4), v(vT0), ss * 32))
A("s_mov_b32 %s, 0" % s(sJ))
A("s_mov_b32 %s, 0" % s(sSlotR))
A.label("L_loop")
A("s_waitcnt vmcnt(4) lgkmcnt(0)")
A("s_barrier")
dma_tile()
A("v_add_u32 %s, %s, %s" % (v(vKr), s(sSlotR), v(vKa)))
A("v_add_u32 %s, %s, %s" % (v(vVr), s(sSlotR), v(vVa)))
for ss in range(8):
    A("ds_read_b128 %s, %s offset:%d" % (v(vK + 4 * ss, 4), v(vKr), ss * 32))
A("s_add_u32 %s, %s, 1" % (s(sT0), s(sJ)))
A("s_cmp_lg_u32 %s, %s" % (s(sT0), s(sNT)))
A("s_cbranch_scc1 L_nomask")
A.c("rem = seglen - 32*j ; kv index = 8*(r>>2) + 4h + (r&3) >= rem -> -inf")
A("s_sub_u32 %s, %s, %s" % (s(sRem), s(sB), s(sA)))
A("s_lshl_b32 %s, %s, 5" % (s(sT0), s(sJ)))
A("s_sub_u32 %s, %s, %s" % (s(sRem), s(sRem), s(sT0)))
A("v_lshrrev_b32 %s, 5, %s" % (v(vT0), v(vLane)))
A("v_lshlrev_b32 %s, 2, %s" % (v(vT0), v(vT0)))
A("v_sub_u32 %s, %s, %s" % (v(vT0), s(sRem), v(vT0)))
A("v_mov_b32 %s, 0xff800000" % v(vT1))
for r in range(16):
    A("v_cmp_ge_i32 vcc, %d, %s" % (8 * (r >> 2) + (r & 3), v(vT0)))
    A("s_nop 1")
    A("v_cndmask_b32 %s, 0, %s, vcc" % (v(vCb + r), v(vT1)) if False else "v_cndmask_b32 %s, %s, %s, vcc" % (v(vCb + r), v(vCb + r), v(vT1)))
A("s_nop 1")
A.label("L_nomask")
for ss in range(8):
    A("s_waitcnt lgkmcnt(%d)" % (7 - ss))
    A("v_mfma_f32_32x32x16_bf16 %s, %s, %s, %s" % (v(vS, 16), v(vK + 4 * ss, 4), v(vQ + 4 * ss, 4), v(vCb, 16) if ss == 0 else v(vS, 16)))
for ks in range(2):
    for blk in range(4):
        f = vV + 4 * (ks * 4 + blk)
        for j in range(2):
            A("ds_read_b64_tr_b16 %s, %s offset:%d" % (v(f + 2 * j, 2), v(vVr), ks * 1024 + j * 512 + blk * 64))
A("s_nop 7")
A("s_nop 7")
A("v_max3_f32 %s, %s, %s, %s" % (v(vT0), v(vS), v(vS + 1), v(vS + 2)))
for i in range(3, 15, 2):
    A("v_max3_f32 %s, %s, %s, %s" % (v(vT0), v(vT0), v(vS + i), v(vS + i + 1)))
A("v_max_f32 %s, %s, %s" % (v(vT0), v(vT0), v(vS + 15)))
A("v_mov_b32 %s, %s" % (v(vT1), v(vT0)))
A("s_nop 1")
A("v_permlane32_swap_b32 %s, %s" % (v(vT0), v(vT1)))
A("s_nop 1")
A("v_max3_f32 %s, %s, %s, %s" % (v(vT0), v(vT0), v(vT1), v(vM)))
A("v_sub_f32 %s, %s, %s" % (v(vT1), v(vM), v(vT0)))
A("v_mul_f32 %s, %s, %s" % (v(vT1), s(sC), v(vT1)))
A("v_exp_f32 %s, %s" % (v(vT1), v(vT1)))
A("v_mov_b32 %s, %s" % (v(vM), v(vT0)))
A("v_mul_f32 %s, %s, %s" % (v(vNM), s(sC), v(vT0)))
for i in range(16):
    A("v_fma_f32 %s, %s, %s, -%s" % (v(vS + i), v(vS + i), s(sC), v(vNM)))
for i in range(16):
    A("v_exp_f32 %s, %s" % (v(vS + i), v(vS + i)))
A("v_mul_f32 %s, %s, %s" % (v(vL), v(vL), v(vT1)))
for i in range(16):
    A("v_add_f32 %s, %s, %s" % (v(vL), v(vL), v(vS + i)))
for i in range(8):
    A("v_cvt_pk_bf16_f32 %s, %s, %s" % (v(vP + i), v(vS + 2 * i), v(vS + 2 * i + 1)))
for i in range(64):
    A("v_mul_f32 %s, %s, %s" % (v(vO + i), v(vO + i), v(vT1)))
A("s_waitcnt lgkmcnt(0)")
A("s_nop 1")
for ks in range(2):
    for blk in range(4):
        A("v_mfma_f32_32x32x16_bf16 %s, %s, %s, %s" % (v(vO + 16 * blk, 16), v(vV + 4 * (ks * 4 + blk), 4), v(vP + 4 * ks, 4), v(vO + 16 * blk, 16)))
A("s_add_u32 %s, %s, %d" % (s(sSlotR), s(sSlotR), SLOT))
A("s_cmp_ge_u32 %s, %d" % (s(sSlotR), NS * SLOT))
A("s_cselect_b32 %s, 0, %s" % (s(sSlotR), s(sSlotR)))
A("s_add_u32 %s, %s, 1" % (s(sJ), s(sJ)))
A("s_cmp_lt_u32 %s, %s" % (s(sJ), s(sNT)))
A("s_nop 7")
A("s_nop 7")
A("s_cbranch_scc1 L_loop")
A("v_mov_b32 %s, %s" % (v(vT1), v(vL)))
A("s_nop 1")
A("v_permlane32_swap_b32 %s, %s" % (v(vL), v(vT1)))
A("s_nop 1")
A("v_add_f32 %s, %s, %s" % (v(vL), v(vL), v(vT1)))
A("v_rcp_f32 %s, %s" % (v(vL), v(vL)))
A("v_and_b32 %s, 31, %s" % (v(vT0), v(vLane)))
A("v_add_u32 %s, %s, %s" % (v(vT0), s(sQ0), v(vT0)))
A("v_cmp_gt_u32 vcc, %s, %s" % (s(sB), v(vT0)))
A("v_lshlrev_b32 %s, 12, %s" % (v(vT0), v(vT0)))
A("v_lshrrev_b32 %s, 5, %s" % (v(vT2), v(vLane)))
A("v_lshl_add_u32 %s, %s, 4, %s" % (v(vT0), v(vT2), v(vT0)))
A("v_mov_b32 %s, 0x7f000000" % v(vT2))
A("v_cndmask_b32 %s, %s, %s, vcc" % (v(vT0), v(vT2), v(vT0)))
for i in range(64):
    A("v_mul_f32 %s, %s, %s" % (v(vO + i), v(vO + i), v(vL)))
for blk in range(4):
    for half in range(2):
        d = vK + 4 * (blk * 2 + half)
        for i in range(4):
            A("v_cvt_pk_bf16_f32 %s, %s, %s" % (v(d + i), v(vO + 16 * blk + 8 * half + 2 * i), v(vO + 16 * blk + 8 * half + 2 * i + 1)))
        A("buffer_store_dwordx4 %s, %s, %s, %s offen offset:%d" % (v(d, 4), v(vT0), s(sO, 4), s(sHead), 64 * blk + 32 * half))
A("s_waitcnt vmcnt(0)")
A.label("L_end")
A("s_endpgm")
tab = ".p2align 4\nL_table:\n" + "".join(".long %d, %d, %d, %d\n" % it for it in items)
open(sys.argv[1], "w").write(wrap(A.text(), NI * 16, 256, LDS, NV, 64, tab))
```
